```python
import torch

def _softmax(x, axis=-1):
    return torch.softmax(x, dim=axis)
def _gelu(x):
    return torch.nn.functional.gelu(x, approximate="tanh")
def _silu(x):
    return torch.nn.functional.silu(x)
def _sigmoid(x):
    return torch.sigmoid(x)
def _layernorm(x, axis=-1, eps=1e-5):
    m = x.mean(dim=axis, keepdim=True)
    v = x.var(dim=axis, keepdim=True, unbiased=False)
    return (x - m) / torch.sqrt(v + eps)
def _scatter_add(tgt, idx, src, axis=0):
    return tgt.clone().index_add_(axis, idx, src)
def _segment_sum(src, seg, n):
    out = torch.zeros((n,) + src.shape[1:], dtype=src.dtype)
    return out.index_add_(0, seg, src)
def _pad(x, pw):
    flat = tuple(v for pair in reversed(pw) for v in pair)
    return torch.nn.functional.pad(x, flat)

kernel_name = 'concat_heads__ssm_conv_s5__mha_block__prompt'

def setup_inputs():

    _w = (lambda a: (lambda t: t.to(torch.bfloat16) if t.is_floating_point() else t)(torch.as_tensor(a)))
    def _A_setup():
        B, S, D = 1, 2048, 576
        P = D
        Lambda_re = -0.5 * (lambda _x: torch.exp(torch.as_tensor(_x)))((lambda *s: torch.randn(*s, dtype=torch.bfloat16) * 0.4)(P))
        Lambda_im = (lambda *s: torch.randn(*s, dtype=torch.bfloat16) * 0.8)(P) * 1.0
        B_re = (lambda *s: torch.randn(*s, dtype=torch.bfloat16) * 0.8)(P, D) * (D ** -0.5)
        B_im = (lambda *s: torch.randn(*s, dtype=torch.bfloat16) * 0.8)(P, D) * (D ** -0.5)
        C_re = (lambda *s: torch.randn(*s, dtype=torch.bfloat16) * 0.8)(D, P) * (P ** -0.5)
        C_im = (lambda *s: torch.randn(*s, dtype=torch.bfloat16) * 0.8)(D, P) * (P ** -0.5)
        log_dt = (lambda *s: torch.randn(*s, dtype=torch.bfloat16) * 0.4)(P) * 0.3 - 2.0
        Dskip = (lambda *s: torch.randn(*s, dtype=torch.bfloat16) * 0.1)(D)
        return {
            "x": _w((lambda *s: torch.randn(*s, dtype=torch.bfloat16) * 0.05)(B, S, D)),
            "Lambda_re": _w(Lambda_re),
            "Lambda_im": _w(Lambda_im),
            "B_re": _w(B_re),
            "B_im": _w(B_im),
            "C_re": _w(C_re),
            "C_im": _w(C_im),
            "log_dt": _w(log_dt),
            "Dskip": _w(Dskip),
        }
    _A_in = _A_setup()

    def _B_setup():
        B, S, D, H = 1, 2048, 576, 32
        return {
            "x": _w((lambda *s: torch.randn(*s, dtype=torch.bfloat16) * 0.2)(B, S, D)),
            "wqkv": _w((lambda *s: torch.randn(*s, dtype=torch.bfloat16) * 0.2)(D, 3 * D)),
            "wo": _w((lambda *s: torch.randn(*s, dtype=torch.bfloat16) * 0.05)(D, D)),
        }
    _B_in = _B_setup()

    return {
        "A_x": _A_in["x"],
        "A_Lambda_re": _A_in["Lambda_re"],
        "A_Lambda_im": _A_in["Lambda_im"],
        "A_B_re": _A_in["B_re"],
        "A_B_im": _A_in["B_im"],
        "A_C_re": _A_in["C_re"],
        "A_C_im": _A_in["C_im"],
        "A_log_dt": _A_in["log_dt"],
        "A_Dskip": _A_in["Dskip"],
        "B_x": _B_in["x"],
        "B_wqkv": _B_in["wqkv"],
        "B_wo": _B_in["wo"],
    }

def reference(A_x, A_Lambda_re, A_Lambda_im, A_B_re, A_B_im, A_C_re, A_C_im, A_log_dt, A_Dskip, B_x, B_wqkv, B_wo):
    def _A_ref(x, Lambda_re, Lambda_im, B_re, B_im, C_re, C_im, log_dt, Dskip):
        Bsz, L, H = x.shape
        Lam = Lambda_re + 1j * Lambda_im
        Bmat = B_re + 1j * B_im
        Cmat = C_re + 1j * C_im
        dt = torch.exp(log_dt)
        Lam_bar = torch.exp(dt * Lam)
        B_bar = ((Lam_bar - 1.0) / Lam)[:, None] * Bmat
        Bu = torch.einsum("bld,pd->blp", x + 0j, B_bar)
        h = torch.zeros_like(Bu[:, 0, :])
        hs = []
        for t in range(L):
            h = Lam_bar[None, :] * h + Bu[:, t, :]
            hs.append(h)
        hseq = torch.stack(hs, 1)
        y = 2.0 * torch.einsum("blp,dp->bld", hseq, Cmat).real + x * Dskip[None, None, :]
        return y

    def _B_ref(x, wqkv, wo):
        B, S, D = x.shape
        H = 32
        Dh = D // H
        qkv = (lambda x, *d: x.permute(*d))((x @ wqkv).reshape(B, S, 3, H, Dh), 2, 0, 3, 1, 4)
        q, k, v = qkv[0], qkv[1], qkv[2]
        scores = torch.einsum("bhqd,bhkd->bhqk", q, k) * (Dh ** -0.5)
        p = _softmax(scores, axis=-1)
        o = torch.einsum("bhqk,bhkd->bhqd", p, v)
        return (lambda x, *d: x.permute(*d))(o, 0, 2, 1, 3).reshape(B, S, D) @ wo

    a = _A_ref(A_x, A_Lambda_re, A_Lambda_im, A_B_re, A_B_im, A_C_re, A_C_im, A_log_dt, A_Dskip)
    b = _B_ref(B_x, B_wqkv, B_wo)
    return torch.concatenate([a, b], axis=-1)
```

```python
class Asm:
    def __init__(self):
        self.lines = []
    def __call__(self, s=""):
        for l in s.split("\n"):
            l = l.strip()
            if not l:
                continue
            if l.endswith(":") and not l.startswith(";"):
                self.lines.append(l)
            else:
                self.lines.append("    " + l)
    def c(self, s):
        self.lines.append("    ; " + s)
    def text(self):
        return "\n".join(self.lines) + "\n"

def magic(d, lim):
    for sh in range(8, 26):
        m = -(-(1 << sh) // d)
        if (lim - 1) * m >= (1 << 32):
            break
        if all((x * m) >> sh == x // d for x in range(lim)):
            return m, sh
    raise ValueError("no magic")

def vr(base, n):
    return f"v[{base}:{base+n-1}]" if n > 1 else f"v{base}"
def sr(base, n):
    return f"s[{base}:{base+n-1}]" if n > 1 else f"s{base}"

KA = dict(A_x=0, Lre=8, Lim=16, B_re=24, B_im=32, C_re=40, C_im=48, log_dt=56, Dskip=64,
          B_x=72, wqkv=80, wo=88, out=96, dbg=104, ws=112)
SZ_X = 2048 * 576 * 2
SZ_WQKV = 576 * 1728 * 2
SZ_SQ = 576 * 576 * 2
SZ_VEC = 576 * 2
SZ_OUT = 2048 * 1152 * 4

HQ = 64 * 1152
HV = 64 * 1216
QIMG = 0
KIMG = QIMG + 32 * HQ
VIMG = KIMG + 32 * HQ
UIMG = VIMG + 32 * HV
UT = 1152 * 64
OIMG = UIMG + 64 * UT
OEXT = OIMG + 32 * 64 * 1024
CPIMG = OEXT + 4 * 64 * 1024
WOIMG = CPIMG + 18 * 72 * 1024
TAB = WOIMG + 18 * 36 * 1024
TABROW = 66 * 8
COEF = TAB + 576 * TABROW
WS_USED = COEF + 576 * 8

def krn_header(name):
    return f""".text
.globl {name}
.p2align 8
.type {name},@function
{name}:
"""

def krn_desc(name, vgpr, sgpr=96):
    acc = (vgpr + 3) // 4 * 4
    return f""".section .rodata,"a"
.p2align 6
.amdhsa_kernel {name}
  .amdhsa_next_free_vgpr {vgpr}
  .amdhsa_next_free_sgpr {sgpr}
  .amdhsa_accum_offset {acc}
  .amdhsa_group_segment_fixed_size 0
  .amdhsa_kernarg_size 120
  .amdhsa_user_sgpr_count 2
  .amdhsa_user_sgpr_kernarg_segment_ptr 1
  .amdhsa_system_sgpr_workgroup_id_x 1
  .amdhsa_float_denorm_mode_32 3
.end_amdhsa_kernel
"""

def srd(a, d, base_lo, size):
    a(f"s_mov_b32 s{d}, s{base_lo}")
    a(f"s_and_b32 s{d+1}, s{base_lo+1}, 0xffff")
    a(f"s_mov_b32 s{d+2}, {size}")
    a(f"s_mov_b32 s{d+3}, 0x20000")


import os
DIAG = int(os.environ.get("DIAG", "0"))
DIAG_OFF = 64 << 20
def stamp(a, idx, sbase=80):
    if DIAG == 1:
        a(f"s_memrealtime s[{sbase+2*idx}:{sbase+2*idx+1}]")
    if DIAG >= 2:
        a(f"s_memtime s[{sbase+2*idx}:{sbase+2*idx+1}]")
def stamp_flush(a, n, wsptr, wave_sgpr, nwaves, sbase=80, tmpv=250, kidx=0):
    if not DIAG:
        return
    a("s_waitcnt lgkmcnt(0)")
    a(f"s_mul_i32 s{sbase+15}, s2, {nwaves}")
    a(f"s_add_u32 s{sbase+15}, s{sbase+15}, s{wave_sgpr}")
    a(f"s_lshl_b32 s{sbase+15}, s{sbase+15}, 5")
    a(f"s_add_u32 s{sbase+15}, s{sbase+15}, {DIAG_OFF + kidx * (1 << 20)}")
    for i in range(n):
        a(f"v_mov_b32 v{tmpv}, s{sbase+2*i}")
        a(f"v_mov_b32 v{tmpv+1}, s{sbase+15}")
        a(f"global_store_dword v{tmpv+1}, v{tmpv}, s[{wsptr}:{wsptr+1}] offset:{4*i}")
        a("s_nop 1")


def pipelined_step(a, nsub, reads, mfmas, advance, barrier_sub=2, last=False, reads_per_gap=3, adv_parts=None, skip_bar=None):
    queue = [tag for _, tag in reads(0, 0)]
    def need(tags):
        idx = max((i for i, t in enumerate(queue) if t in tags), default=-1)
        if idx >= 0:
            n = len(queue) - 1 - idx
            a(f"s_waitcnt lgkmcnt({n})")
            del queue[:idx + 1]
    for j in range(nsub):
        if j == barrier_sub and not last:
            if skip_bar is not None:
                cnt, lab = skip_bar
                a(f"s_cmp_eq_u32 {cnt}, 1")
                a(f"s_cbranch_scc1 {lab}")
                a("s_barrier")
                a(f"{lab}:")
            else:
                a("s_barrier")
        nxt = []
        if j < nsub - 1:
            nxt = reads(j + 1, (j + 1) & 1)
        elif not last:
            nxt = reads(0, 0)
        k = 0
        ml = mfmas(j & 1)
        for i, (text, tags) in enumerate(ml):
            need(set(tags))
            a(text)
            if i == 0 and j == nsub - 1 and not last and advance is not None:
                advance()
            for rt, tag in nxt[k:k + reads_per_gap]:
                a(rt)
                queue.append(tag)
            k += reads_per_gap
            if adv_parts is not None and not last and i == len(ml) - 2:
                for x in adv_parts[j]:
                    a(x)
        for rt, tag in nxt[k:]:
            a(rt)
            queue.append(tag)
    assert len(queue) <= 15, queue
    return queue


def code_prefetch(a, tag, start, end, vlane, vtmp, vdst, sp=76):
    if int(os.environ.get("NOCPF", "0")):
        return
    a(f"s_getpc_b64 s[{sp}:{sp+1}]")
    a(f"L_cpf_{tag}:")
    a(f"s_add_u32 s{sp}, s{sp}, {start}-L_cpf_{tag}")
    a(f"s_addc_u32 s{sp+1}, s{sp+1}, -1" if False else f"s_addc_u32 s{sp+1}, s{sp+1}, SIGN_{tag}")
    a.lines.pop()
    a(f"s_addc_u32 s{sp+1}, s{sp+1}, (({start}-L_cpf_{tag})>>32)")
    a(f"v_lshlrev_b32 v{vtmp}, 7, v{vlane}")
    a(f"v_min_u32 v{vtmp}, {end}-{start}-4, v{vtmp}")
    a(f"global_load_dword v{vdst}, v{vtmp}, s[{sp}:{sp+1}]")
    a(f"v_lshlrev_b32 v{vtmp}, 7, v{vlane}")
    a(f"v_add_u32 v{vtmp}, 8192, v{vtmp}")
    a(f"v_min_u32 v{vtmp}, {end}-{start}-4, v{vtmp}")
    a(f"global_load_dword v{vdst}, v{vtmp}, s[{sp}:{sp+1}]")
```

```python
import sys, importlib
sys.path.insert(0, "gen")
from common import *

HEADER = open("concat_heads__ssm_conv_s5__mha_block__prompt.s.ref").read().split("; Override launch geometry")[0]

def build(kernels, out):
    txt = HEADER
    body = ""
    seen = set()
    for mod, grid, block in kernels:
        m = importlib.import_module(mod)
        txt += f"; @launch kernel={m.NAME} grid=({grid},1,1) block=({block},1,1) lds={m.LDS}\n"
        if mod not in seen:
            body += m.gen() + "\n"
            seen.add(mod)
    import os, re
    fl = os.environ.get("STFLAG", "")
    if fl:
        out_lines = []
        for l in body.split("\n"):
            if l.strip().startswith("buffer_store") and "s[20:23]" in l:
                l = l + " " + fl
            out_lines.append(l)
        body = "\n".join(out_lines)
    fo = os.environ.get("OUTFLAG", "")
    if fo:
        out_lines = []
        for l in body.split("\n"):
            if l.strip().startswith("buffer_store") and "s[8:11]" in l:
                l = l + " " + fo
            out_lines.append(l)
        body = "\n".join(out_lines)
    txt += '.amdgcn_target "amdgcn-amd-amdhsa--gfx950"\n' + body
    open(out, "w").write(txt)

if __name__ == "__main__":
    which = sys.argv[1].split(",")
    out = sys.argv[2]
    allk = {"k1": ("k1", 256, 512), "k2": ("k2", 256, 1024), "k3": ("k3", 256, 640)}
    build([allk[k] for k in which], out)
```

```python
import sys, importlib
sys.path.insert(0, "gen")
from common import *

HEADER = open("concat_heads__ssm_conv_s5__mha_block__prompt.s.ref").read().split("; Override launch geometry")[0]

def build(kernels, out):
    txt = HEADER
    body = ""
    seen = set()
    for mod, grid, block in kernels:
        m = importlib.import_module(mod)
        txt += f"; @launch kernel={m.NAME} grid=({grid},1,1) block=({block},1,1) lds={m.LDS}\n"
        if mod not in seen:
            body += m.gen() + "\n"
            seen.add(mod)
    import os, re
    fl = os.environ.get("STFLAG", "")
    if fl:
        out_lines = []
        for l in body.split("\n"):
            if l.strip().startswith("buffer_store") and "s[20:23]" in l:
                l = l + " " + fl
            out_lines.append(l)
        body = "\n".join(out_lines)
    f1 = os.environ.get("K1FLAG", "")
    if f1:
        out_lines = []
        ink1 = False
        for l in body.split("\n"):
            if l.startswith("s5mha_k1_kernel:"): ink1 = True
            if l.startswith("s5mha_k2_kernel:"): ink1 = False
            if ink1 and l.strip().startswith("buffer_store") and "s[20:23]" in l:
                l = l + " " + f1
            out_lines.append(l)
        body = "\n".join(out_lines)
    fo = os.environ.get("OUTFLAG", "")
    if fo:
        out_lines = []
        for l in body.split("\n"):
            if l.strip().startswith("buffer_store") and "s[8:11]" in l:
                l = l + " " + fo
            out_lines.append(l)
        body = "\n".join(out_lines)
    txt += '.amdgcn_target "amdgcn-amd-amdhsa--gfx950"\n' + body
    open(out, "w").write(txt)

if __name__ == "__main__":
    which = sys.argv[1].split(",")
    out = sys.argv[2]
    allk = {"k1": ("k1", 256, 512), "k2": ("k2", 256, 1024), "k3": ("k3", 256, 640)}
    build([allk[k] for k in which], out)
```

```python
import sys, importlib
sys.path.insert(0, "gen")
from common import *

HEADER = open("concat_heads__ssm_conv_s5__mha_block__prompt.s.ref").read().split("; Override launch geometry")[0]

def build(kernels, out):
    txt = HEADER
    body = ""
    seen = set()
    for mod, grid, block in kernels:
        m = importlib.import_module(mod)
        txt += f"; @launch kernel={m.NAME} grid=({grid},1,1) block=({block},1,1) lds={m.LDS}\n"
        if mod not in seen:
            body += m.gen() + "\n"
            seen.add(mod)
    import os, re
    fl = os.environ.get("STFLAG", "")
    if fl:
        out_lines = []
        for l in body.split("\n"):
            if l.strip().startswith("buffer_store") and "s[20:23]" in l:
                l = l + " " + fl
            out_lines.append(l)
        body = "\n".join(out_lines)
    f1 = os.environ.get("K1FLAG", "sc1")
    if f1:
        out_lines = []
        ink1 = False
        for l in body.split("\n"):
            if l.startswith("s5mha_k1_kernel:"): ink1 = True
            if l.startswith("s5mha_k2_kernel:"): ink1 = False
            if ink1 and l.strip().startswith("buffer_store") and "s[20:23]" in l:
                l = l + " " + f1
            out_lines.append(l)
        body = "\n".join(out_lines)
    k2o = os.environ.get("K2O", ""); k2h = os.environ.get("K2H", ""); k2c = os.environ.get("K2C", "")
    ld1 = os.environ.get("LD1", ""); ld3 = os.environ.get("LD3", "")
    out_lines = []
    cur = None
    for l in body.split("\n"):
        for k in ("k1", "k2", "k3"):
            if l.startswith(f"s5mha_{k}_kernel:"): cur = k
        t = l.strip()
        if cur == "k2" and t.startswith("buffer_store"):
            if " s31 " in t + " " and k2o and (os.environ.get("K2OX4") is None or "dwordx4" in t): l += " " + k2o
            if (" s47 " in t or " s48 " in t) and k2h: l += " " + k2h
            if (" s52 " in t or " s53 " in t) and k2c: l += " " + k2c
        if cur == "k1" and t.startswith("buffer_load") and t.endswith("lds") and ld1: l = l[:-3] + ld1 + " lds"
        if cur == "k3" and t.startswith("buffer_load") and t.endswith("lds") and ld3: l = l[:-3] + ld3 + " lds"
        out_lines.append(l)
    body = "\n".join(out_lines)
    fo = os.environ.get("OUTFLAG", "nt")
    if fo:
        out_lines = []
        for l in body.split("\n"):
            if l.strip().startswith("buffer_store") and "s[8:11]" in l:
                l = l + " " + fo
            out_lines.append(l)
        body = "\n".join(out_lines)
    txt += '.amdgcn_target "amdgcn-amd-amdhsa--gfx950"\n' + body
    open(out, "w").write(txt)

if __name__ == "__main__":
    which = sys.argv[1].split(",")
    out = sys.argv[2]
    allk = {"k1": ("k1", 256, 512), "k2": ("k2", 256, 1024), "k3": ("k3", 256, 640)}
    build([allk[k] for k in which], out)
```

```python
import sys, importlib
sys.path.insert(0, "gen")
from common import *

HEADER = open("concat_heads__ssm_conv_s5__mha_block__prompt.s.ref").read().split("; Override launch geometry")[0]

def build(kernels, out):
    txt = HEADER
    body = ""
    seen = set()
    for mod, grid, block in kernels:
        m = importlib.import_module(mod)
        txt += f"; @launch kernel={m.NAME} grid=({grid},1,1) block=({block},1,1) lds={m.LDS}\n"
        if mod not in seen:
            body += m.gen() + "\n"
            seen.add(mod)
    import os, re
    fl = os.environ.get("STFLAG", "")
    if fl:
        out_lines = []
        for l in body.split("\n"):
            if l.strip().startswith("buffer_store") and "s[20:23]" in l:
                l = l + " " + fl
            out_lines.append(l)
        body = "\n".join(out_lines)
    f1 = os.environ.get("K1FLAG", "sc1")
    if True:
        out_lines = []
        ink1 = False
        for l in body.split("\n"):
            if l.startswith("s5mha_k1_kernel:"): ink1 = True
            if l.startswith("s5mha_k2_kernel:"): ink1 = False
            if ink1 and l.strip().startswith("buffer_store") and "s[20:23]" in l:
                fl_ = f1
                if ";BU" in l: fl_ = os.environ.get("K1BU", f1)
                if ";QKV" in l: fl_ = os.environ.get("K1QKV", f1)
                l = l.split(";")[0].rstrip() + " " + fl_
            out_lines.append(l)
        body = "\n".join(out_lines)
    k2o = os.environ.get("K2O", ""); k2h = os.environ.get("K2H", ""); k2c = os.environ.get("K2C", "")
    ld1 = os.environ.get("LD1", ""); ld3 = os.environ.get("LD3", "")
    out_lines = []
    cur = None
    for l in body.split("\n"):
        for k in ("k1", "k2", "k3"):
            if l.startswith(f"s5mha_{k}_kernel:"): cur = k
        t = l.strip()
        if cur == "k2" and t.startswith("buffer_store"):
            if " s31 " in t + " " and k2o and (os.environ.get("K2OX4") is None or "dwordx4" in t): l += " " + k2o
            if (" s47 " in t or " s48 " in t) and k2h: l += " " + k2h
            if (" s52 " in t or " s53 " in t) and k2c: l += " " + k2c
        if cur == "k1" and t.startswith("buffer_load") and t.endswith("lds") and ld1: l = l[:-3] + ld1 + " lds"
        if cur == "k3" and t.startswith("buffer_load") and t.endswith("lds") and ld3: l = l[:-3] + ld3 + " lds"
        out_lines.append(l)
    body = "\n".join(out_lines)
    fo = os.environ.get("OUTFLAG", "nt")
    if fo:
        out_lines = []
        for l in body.split("\n"):
            if l.strip().startswith("buffer_store") and "s[8:11]" in l:
                l = l + " " + fo
            out_lines.append(l)
        body = "\n".join(out_lines)
    txt += '.amdgcn_target "amdgcn-amd-amdhsa--gfx950"\n' + body
    open(out, "w").write(txt)

if __name__ == "__main__":
    which = sys.argv[1].split(",")
    out = sys.argv[2]
    allk = {"k1": ("k1", 256, 512), "k2": ("k2", 256, 1024), "k3": ("k3", 256, 640)}
    build([allk[k] for k in which], out)
```

```python
import sys, importlib
sys.path.insert(0, "gen")
from common import *

HEADER = open("concat_heads__ssm_conv_s5__mha_block__prompt.s.ref").read().split("; Override launch geometry")[0]


NOTES = """; ---------------------------------------------------------------------------------------------------------------------
;  k1  x_B*Wqkv and x_A*[B_re|B_im]^T as LDS-DMA fed MFMA GEMMs (128x192 tiles, loader waves + MFMA waves).  Outputs are stored
;  k2  attention, one workgroup per (head, 256 queries), whole K/V of the head resident in LDS.  S^T = K Q^T (MFMA), P = exp2(S),
;      O^T += V^T P (MFMA; the ones row of V yields the softmax denominator).  Softmax shift: the first pass uses shift 0, which is
;      The exact linear recurrence h_t = lam h_{t-1} + u_t is evaluated by four waves per workgroup: 32 sequential steps per lane,
;  k3  out[:, :576] = h C'^T + x_A * Dskip and out[:, 576:] = O Wo.
; ---------------------------------------------------------------------------------------------------------------------
"""

def build(kernels, out):
    txt = HEADER
    body = ""
    seen = set()
    for mod, grid, block in kernels:
        m = importlib.import_module(mod)
        txt += f"; @launch kernel={m.NAME} grid=({grid},1,1) block=({block},1,1) lds={m.LDS}\n"
        if mod not in seen:
            body += m.gen() + "\n"
            seen.add(mod)
    import os, re
    fl = os.environ.get("STFLAG", "")
    if fl:
        out_lines = []
        for l in body.split("\n"):
            if l.strip().startswith("buffer_store") and "s[20:23]" in l:
                l = l + " " + fl
            out_lines.append(l)
        body = "\n".join(out_lines)
    f1 = os.environ.get("K1FLAG", "sc1")
    if True:
        out_lines = []
        ink1 = False
        for l in body.split("\n"):
            if l.startswith("s5mha_k1_kernel:"): ink1 = True
            if l.startswith("s5mha_k2_kernel:"): ink1 = False
            if ink1 and l.strip().startswith("buffer_store") and "s[20:23]" in l:
                fl_ = f1
                if ";BU" in l: fl_ = os.environ.get("K1BU", f1)
                if ";QKV" in l: fl_ = os.environ.get("K1QKV", f1)
                l = l.split(";")[0].rstrip() + " " + fl_
            out_lines.append(l)
        body = "\n".join(out_lines)
    k2o = os.environ.get("K2O", ""); k2h = os.environ.get("K2H", ""); k2c = os.environ.get("K2C", "")
    ld1 = os.environ.get("LD1", ""); ld3 = os.environ.get("LD3", "")
    out_lines = []
    cur = None
    for l in body.split("\n"):
        for k in ("k1", "k2", "k3"):
            if l.startswith(f"s5mha_{k}_kernel:"): cur = k
        t = l.strip()
        if cur == "k2" and t.startswith("buffer_store"):
            if " s31 " in t + " " and k2o and (os.environ.get("K2OX4") is None or "dwordx4" in t): l += " " + k2o
            if (" s47 " in t or " s48 " in t) and k2h: l += " " + k2h
            if (" s52 " in t or " s53 " in t) and k2c: l += " " + k2c
        if cur == "k1" and t.startswith("buffer_load") and t.endswith("lds") and ld1: l = l[:-3] + ld1 + " lds"
        if cur == "k3" and t.startswith("buffer_load") and t.endswith("lds") and ld3: l = l[:-3] + ld3 + " lds"
        out_lines.append(l)
    body = "\n".join(out_lines)
    fo = os.environ.get("OUTFLAG", "nt")
    if fo:
        out_lines = []
        for l in body.split("\n"):
            if l.strip().startswith("buffer_store") and "s[8:11]" in l:
                l = l + " " + fo
            out_lines.append(l)
        body = "\n".join(out_lines)
    txt += NOTES + '.amdgcn_target "amdgcn-amd-amdhsa--gfx950"\n' + body
    open(out, "w").write(txt)

if __name__ == "__main__":
    which = sys.argv[1].split(",")
    out = sys.argv[2]
    allk = {"k1": ("k1", 256, 512), "k2": ("k2", 256, 1024), "k3": ("k3", 256, 640)}
    build([allk[k] for k in which], out)
```
